```python
import torch

def _softmax(x, axis=-1):
    return torch.softmax(x, dim=axis)
def _gelu(x):
    return torch.nn.functional.gelu(x, approximate="tanh")
def _silu(x):
    return torch.nn.functional.silu(x)
def _sigmoid(x):
    return torch.sigmoid(x)
def _layernorm(x, axis=-1, eps=1e-5):
    m = x.mean(dim=axis, keepdim=True)
    v = x.var(dim=axis, keepdim=True, unbiased=False)
    return (x - m) / torch.sqrt(v + eps)
def _scatter_add(tgt, idx, src, axis=0):
    return tgt.clone().index_add_(axis, idx, src)
def _segment_sum(src, seg, n):
    out = torch.zeros((n,) + src.shape[1:], dtype=src.dtype)
    return out.index_add_(0, seg, src)
def _pad(x, pw):
    flat = tuple(v for pair in reversed(pw) for v in pair)
    return torch.nn.functional.pad(x, flat)

kernel_name = 'parallel_sum__softmax_full_mha__dense_activation_relu__prompt'

def setup_inputs():

    _w = (lambda a: (lambda t: t.to(torch.bfloat16) if t.is_floating_point() else t)(torch.as_tensor(a)))
    def _A_setup():
        B, S, D = 1, 2048, 576
        return {
            "x": _w((lambda *s: torch.randn(*s, dtype=torch.bfloat16) * 0.05)(B, S, D)),
            "wqkv": _w((lambda *s: torch.randn(*s, dtype=torch.bfloat16) * 0.2)(D, 3 * D)),
            "wo": _w((lambda *s: torch.randn(*s, dtype=torch.bfloat16) * 0.1)(D, D)),
        }
    _A_in = _A_setup()

    def _B_setup():
        B, S, D, Dff = 1, 2048, 576, 4608
        return {
            "x": _w((lambda *s: torch.randn(*s, dtype=torch.bfloat16) * 0.05)(B, S, D)),
            "w1": _w((lambda *s: torch.randn(*s, dtype=torch.bfloat16) * 0.1)(D, Dff)),
            "w2": _w((lambda *s: torch.randn(*s, dtype=torch.bfloat16) * 0.1)(Dff, D)),
        }
    _B_in = _B_setup()

    return {
        "A_x": _A_in["x"],
        "A_wqkv": _A_in["wqkv"],
        "A_wo": _A_in["wo"],
        "B_x": _B_in["x"],
        "B_w1": _B_in["w1"],
        "B_w2": _B_in["w2"],
    }

def reference(A_x, A_wqkv, A_wo, B_x, B_w1, B_w2):
    def _A_ref(x, wqkv, wo):
        B, S, D = x.shape
        H = 32; Dh = D // H
        qkv = (lambda x, *d: x.permute(*d))((x @ wqkv).reshape(B, S, 3, H, Dh), 2, 0, 3, 1, 4)
        q, k, v = qkv[0], qkv[1], qkv[2]
        scale = Dh ** -0.5
        scores = torch.einsum("bhqd,bhkd->bhqk", q, k) * scale
        p = _softmax(scores, axis=-1)
        o = torch.einsum("bhqk,bhkd->bhqd", p, v)
        return (lambda x, *d: x.permute(*d))(o, 0, 2, 1, 3).reshape(B, S, D) @ wo

    def _B_ref(x, w1, w2):
        h = torch.einsum("bsd,df->bsf", x, w1)
        zero = torch.zeros_like(h)
        h = torch.maximum(h, zero)
        return torch.einsum("bsf,fd->bsd", h, w2)

    x = A_x
    xn = _layernorm(x, axis=-1)
    return x + _A_ref(xn, A_wqkv, A_wo) + _B_ref(xn, B_w1, B_w2)
```

```python
import re

class Asm:
    def __init__(self):
        self.lines = []
    def e(self, s):
        for l in s.split("\n"):
            l = l.strip()
            if l:
                self.lines.append(l)
    def label(self, name):
        self.lines.append(name + ":")
    def c(self, text):
        self.lines.append("; " + text)
    def text(self):
        out = []
        for l in self.lines:
            if l.endswith(":") or l.startswith(".") :
                out.append(l)
            else:
                out.append("    " + l)
        return "\n".join(out) + "\n"

def vr(base, n=1):
    return f"v{base}" if n == 1 else f"v[{base}:{base+n-1}]"
def ar(base, n=1):
    return f"a{base}" if n == 1 else f"a[{base}:{base+n-1}]"
def sr(base, n=1):
    return f"s{base}" if n == 1 else f"s[{base}:{base+n-1}]"

_REG = re.compile(r"^(-|\|)?(abs\()?([vas])(\d+|\[(\d+):(\d+)\])\)?\|?$")
def regs(tok):
    tok = tok.strip()
    if tok in ("vcc", "vcc_lo", "vcc_hi"): return {("s", 106), ("s", 107)}
    if tok == "exec": return {("s", 126), ("s", 127)}
    if tok == "m0": return {("s", 124)}
    m = _REG.match(tok)
    if not m: return set()
    f = m.group(3)
    if m.group(5) is not None:
        return {(f, i) for i in range(int(m.group(5)), int(m.group(6)) + 1)}
    return {(f, int(m.group(4)))}

def split_ops(s):
    ops, depth, cur = [], 0, ""
    for ch in s:
        if ch in "[(": depth += 1
        if ch in "])": depth -= 1
        if ch == "," and depth == 0:
            ops.append(cur.strip()); cur = ""
        else:
            cur += ch
    if cur.strip(): ops.append(cur.strip())
    return ops

TRANS = ("v_exp_f32", "v_log_f32", "v_rcp_f32", "v_rsq_f32", "v_sqrt_f32", "v_sin_f32", "v_cos_f32", "v_rcp_iflag_f32")
MFMA_PASSES = {"v_mfma_f32_32x32x16_bf16": 8, "v_mfma_f32_32x32x8bf16_1k": 8, "v_mfma_f32_16x16x32_bf16": 4,
               "v_mfma_f32_16x16x16bf16_1k": 4}

class Ins:
    __slots__ = ("text", "mn", "kind", "w", "r", "states", "extra")
    def __init__(self, text):
        self.text = text
        t = text.split(";")[0].strip()
        p = t.split(None, 1)
        self.mn = p[0]
        rest = p[1] if len(p) > 1 else ""
        ops = split_ops(rest)
        first = [o.split()[0] if o.split() else o for o in ops]
        self.w, self.r, self.states, self.extra = set(), set(), 1, {}
        mn = self.mn
        mnb = re.sub(r"_(e32|e64|sdwa|dpp)$", "", mn)
        if mn == "s_nop":
            self.kind = "nop"; self.states = int(first[0], 0) + 1
        elif mn.startswith("v_mfma"):
            self.kind = "mfma"
            self.w = regs(first[0]); self.extra = dict(A=regs(first[1]), B=regs(first[2]), C=regs(first[3]), D=regs(first[0]),
                                                       passes=MFMA_PASSES[mn])
            self.r = self.extra["A"] | self.extra["B"] | self.extra["C"]
        elif mn.startswith("v_"):
            self.kind = "trans" if mnb in TRANS else "valu"
            if mnb.startswith("v_cmp"):
                self.w = regs(first[0]); rs = first[1:]
                if mnb.startswith("v_cmpx"): self.w |= regs("exec")
            elif mnb in ("v_add_co_u32", "v_sub_co_u32", "v_addc_co_u32", "v_subb_co_u32"):
                self.w = regs(first[0]) | regs(first[1]); rs = first[2:]
            elif mnb.startswith("v_permlane") and "swap" in mnb:
                self.w = regs(first[0]) | regs(first[1]); rs = first
            else:
                self.w = regs(first[0]); rs = first[1:]
            for o in rs: self.r |= regs(o)
            if mnb in ("v_fmac_f32", "v_dot2c_f32_bf16", "v_pk_fmac_f16") or "UNUSED_PRESERVE" in rest and "dst_sel:DWORD" not in rest:
                self.r |= regs(first[0])
            if mnb == "v_cndmask_b32" and len(first) == 3: self.r |= regs("vcc")
            self.extra = dict(base=mnb, dpp=("row_" in rest or "quad_perm" in rest or mn.endswith("_dpp")))
        elif mn.startswith("ds_"):
            self.kind = "ds"
            if mn.startswith("ds_read") or mn.startswith("ds_bpermute") or mn.startswith("ds_swizzle"):
                self.w = regs(first[0])
                for o in first[1:]: self.r |= regs(o)
            else:
                for o in first: self.r |= regs(o)
        elif mn.startswith("buffer_") or mn.startswith("global_"):
            self.kind = "vmem"
            is_lds = bool(re.search(r"\blds\b", rest))
            wide = bool(re.search(r"x3|x4", mn))
            self.extra = dict(lds=is_lds, store=("store" in mn or "atomic" in mn), wide=wide, data=set())
            if mn in ("buffer_inv", "buffer_wbl2"):
                pass
            elif "load" in mn and not is_lds:
                self.w = regs(first[0])
                for o in first[1:]: self.r |= regs(o)
            elif "load" in mn and is_lds:
                for o in first: self.r |= regs(o)
                self.r |= regs("m0")
            else:
                for o in first: self.r |= regs(o)
                if mn.startswith("buffer_"): self.extra["data"] = regs(first[0])
                else: self.extra["data"] = regs(first[1])
                if "atomic" in mn and "sc0" in rest and mn.startswith("global_"):
                    self.w = regs(first[0]); self.extra["data"] = regs(first[2])
        elif mn.startswith("s_"):
            self.kind = "salu"
            nodst = ("s_cmp", "s_waitcnt", "s_barrier", "s_branch", "s_cbranch", "s_endpgm", "s_setprio", "s_sleep", "s_bitcmp", "s_setreg")
            if mn.startswith(nodst):
                for o in first: self.r |= regs(o)
            else:
                self.w = regs(first[0]) if first else set()
                for o in first[1:]: self.r |= regs(o)
                if "saveexec" in mn: self.w |= regs("exec"); self.r |= regs("exec")
        else:
            raise ValueError("unknown instruction: " + text)

def isvgpr(rs): return {x for x in rs if x[0] in "va"}
def issgpr(rs): return {x for x in rs if x[0] == "s"}

def check(lines, name="", window=24, quiet=False):
    ins = [Ins(l) for l in lines if not (l.endswith(":") or l.startswith(".") or l.startswith(";"))]
    errs = []
    for i, c in enumerate(ins):
        dist = 0
        for j in range(i - 1, max(-1, i - window - 1), -1):
            p = ins[j]
            need = 0; why = ""
            if p.kind in ("valu", "trans"):
                pw_v = isvgpr(p.w); pw_s = issgpr(p.w)
                if c.kind == "mfma" and pw_v & c.r: need, why = 2, "VALU->MFMA operand"
                if c.kind == "mfma" and pw_s & regs("exec"): need, why = max(need, 4), "VALU exec->MFMA"
                if p.kind == "trans" and c.kind in ("valu",) and pw_v & c.r: need, why = max(need, 1), "trans->VALU"
                if c.kind in ("valu", "trans"):
                    b = c.extra.get("base", "")
                    if b.startswith("v_permlane") and pw_v & c.r: need, why = max(need, 2), "VALU->permlane"
                    if b in ("v_readfirstlane_b32", "v_readlane_b32") and pw_v & c.r: need, why = max(need, 1), "VALU->readlane"
                    if c.extra.get("dpp") and pw_v & c.r: need, why = max(need, 2), "VALU->DPP"
                    if pw_s & issgpr(c.r) and not b.startswith("v_readlane"): need, why = max(need, 2), "VALU sgpr->VALU read"
                    if pw_s & issgpr(c.r) and b.startswith(("v_readlane", "v_writelane")): need, why = max(need, 4), "VALU sgpr->lane select"
                if c.kind == "vmem" and pw_s & c.r: need, why = max(need, 5), "VALU sgpr->VMEM"
            if p.kind == "salu" and (("s", 124) in p.w) and c.kind == "vmem" and c.extra.get("lds"):
                need, why = 1, "M0->LDS DMA"
            if p.kind == "valu" and False: pass
            if p.kind == "vmem" and p.extra.get("store") and p.extra.get("wide"):
                if c.kind in ("valu", "trans") and p.extra["data"] & c.w: need, why = max(need, 2), "store data WAR"
                elif c.kind in ("ds", "vmem", "mfma") and p.extra["data"] & c.w: need, why = max(need, 1), "store data WAR"
            if p.kind == "mfma":
                ps = p.extra["passes"]; D = p.extra["D"]
                big = {2: 5, 4: 8, 8: 12, 16: 20}[ps]
                if c.kind == "mfma":
                    if D & c.extra["C"]:
                        if D == c.extra["C"] and ps == c.extra["passes"]: pass
                        else: need, why = max(need, {2: 4, 4: 6, 8: 10, 16: 18}[ps]), "MFMA D->overlapping C"
                    if D & (c.extra["A"] | c.extra["B"]): need, why = max(need, big), "MFMA D->A/B"
                    if D & c.extra["D"] and not (D & c.extra["C"]):
                        need, why = max(need, 0), ""
                elif c.kind in ("valu", "trans", "ds", "vmem"):
                    if D & (c.r | c.w): need, why = max(need, big), "MFMA D->VALU/mem"
                    if c.kind in ("valu", "trans") and p.extra["C"] & c.w:
                        need, why = max(need, {2: 1, 4: 3, 8: 7, 16: 15}[ps]), "MFMA C WAR"
            if need > dist:
                errs.append(f"{name}: [{why}] needs {need} wait states, has {dist}:\n    {p.text}\n    {c.text}")
            dist += p.states
            if dist >= 20: break
    if errs and not quiet:
        for x in errs[:30]: print(x)
        print(f"{name}: {len(errs)} hazard(s)")
    return errs
```

```python
from asmlib import *
import layout as L

NB = 8
OFF = 96.0
L_LIMIT = 0x71800000
O_LIMIT = 0x7E800000

class AttnRegs:
    Sa, Sb, Pa, Pb, Oa, Ob = 16, 32, 48, 56, 64, 80
    Qa, Qb, Ra, Rb = 96, 100, 104, 106
    vL16, vR8, vV, vMa, vMb, vT0, vT1, vT2, vT3, vLane = 108, 109, 110, 111, 112, 113, 114, 115, 116, 117
    ring = 0
    srd = 8
    sK, sKR, sV = 20, 21, 22
    sK0, sKR0, sV0 = 23, 24, 25
    sFb, sOff, sCnt, sHead, sTa = 26, 27, 28, 29, 30
    sMaskV, sMaskLo = 32, 34
    sTmp, sTmp2 = 36, 37
R = AttnRegs

def kb(b): return ar(R.ring + 16*b, 4)
def krb(b): return ar(R.ring + 16*b + 4, 2)
def krb0(b): return ar(R.ring + 16*b + 4)
def vb(b, t): return ar(R.ring + 16*b + 8 + 4*t, 4)

def ring_loads(a, b):
    a.e(f"buffer_load_dwordx4 {kb(b)}, v{R.vL16}, s[{R.srd}:{R.srd+3}], s{R.sK} offen")
    a.e(f"buffer_load_dword {krb0(b)}, v{R.vR8}, s[{R.srd}:{R.srd+3}], s{R.sKR} offen")
    a.e(f"s_mov_b64 exec, s[{R.sMaskV}:{R.sMaskV+1}]")
    a.e(f"buffer_load_dwordx4 {vb(b,0)}, v{R.vV}, s[{R.srd}:{R.srd+3}], s{R.sV} offen")
    a.e(f"buffer_load_dwordx4 {vb(b,1)}, v{R.vV}, s[{R.srd}:{R.srd+3}], s{R.sV} offen offset:576")
    a.e("s_mov_b64 exec, -1")
    a.e(f"s_add_u32 s{R.sK}, s{R.sK}, 1024\ns_add_u32 s{R.sKR}, s{R.sKR}, 256\ns_add_u32 s{R.sV}, s{R.sV}, 1152")

def qk_main(S, Q, b): return f"v_mfma_f32_32x32x16_bf16 {vr(S,16)}, {kb(b)}, {vr(Q,4)}, 0"
def qk_rem(S, Rr, b): return f"v_mfma_f32_32x32x8bf16_1k {vr(S,16)}, {krb(b)}, {vr(Rr,2)}, {vr(S,16)}"
def pv(O, P, b, t):   return f"v_mfma_f32_32x32x16_bf16 {vr(O,16)}, {vb(b,t)}, {vr(P+4*t,4)}, {vr(O,16)}"

def slot(a, SX, PX, m, extra=None):
    extra = extra or {}
    ex = lambda i: f"v_exp_f32 v{SX+i}, v{SX+i}"
    cv = lambda i: f"v_cvt_pk_bf16_f32 v{PX+i}, v{SX+2*i}, v{SX+2*i+1}"
    a.e(m[0]);  [a.e(ex(i)) for i in range(0, 4)]
    for x in extra.get(0, []): a.e(x)
    a.e(m[1]);  a.e(ex(4)); a.e(ex(5)); a.e(cv(0)); a.e(ex(6)); a.e(ex(7)); a.e(cv(1))
    for x in extra.get(1, []): a.e(x)
    a.e(m[2]);  a.e(ex(8)); a.e(ex(9)); a.e(cv(2)); a.e(ex(10)); a.e(ex(11)); a.e(cv(3))
    for x in extra.get(2, []): a.e(x)
    a.e(m[3]);  a.e(ex(12)); a.e(ex(13)); a.e(cv(4)); a.e(ex(14)); a.e(ex(15)); a.e(cv(5)); a.e(cv(6)); a.e(cv(7))
    for x in extra.get(3, []): a.e(x)

def lines_of(fn, *args):
    t = Asm(); fn(t, *args); return t.lines

def max16(a, S, M, first):
    if first:
        a.e(f"v_max3_f32 v{M}, v{S}, v{S+1}, v{S+2}")
        a.e(f"v_max_f32 v{M}, v{M}, v{S+3}")
        rest = range(4, 16, 2)
    else:
        rest = range(0, 16, 2)
    for i in rest:
        a.e(f"v_max3_f32 v{M}, v{M}, v{S+i}, v{S+i+1}")

def cross_half_max(a, M):
    a.e(f"v_mov_b32 v{R.vT0}, v{M}\nv_mov_b32 v{R.vT1}, v{M}\ns_nop 1")
    a.e(f"v_permlane32_swap_b32 v{R.vT0}, v{R.vT1}")
    a.e(f"s_nop 1\nv_max_f32 v{M}, v{R.vT0}, v{R.vT1}")

def set_shift(a, M, Rr):
    a.e(f"v_add_f32 v{R.vT0}, s{R.sOff}, v{M}")
    a.e(f"v_sub_f32 v{R.vT0}, 0, v{R.vT0}")
    a.e(f"v_cvt_pk_bf16_f32 v{R.vT1}, v{R.vT0}, v{R.vT0}")
    a.e(f"v_lshlrev_b32 v{R.vT1}, 16, v{R.vT1}")
    a.e(f"v_sub_f32 v{R.vT2}, v{R.vT0}, v{R.vT1}")
    a.e(f"v_cvt_pk_bf16_f32 v{R.vT0}, v{R.vT1}, v{R.vT2}")
    a.e(f"v_cndmask_b32 v{Rr+1}, 0, v{R.vT0}, s[{R.sMaskLo}:{R.sMaskLo+1}]")

def emit_setup(a):
    a.e(f"v_lshlrev_b32 v{R.vL16}, 4, v{R.vLane}")
    a.e(f"v_and_b32 v{R.vT0}, 31, v{R.vLane}")
    a.e(f"v_lshrrev_b32 v{R.vT1}, 5, v{R.vLane}")
    a.e(f"s_lshl_b32 s{R.sTmp2}, s{R.sTmp2}, 2")
    a.e(f"v_lshl_add_u32 v{R.vR8}, v{R.vT0}, 3, s{R.sTmp2}")
    a.e(f"v_mul_u32_u24 v{R.vV}, 288, v{R.vT1}")
    a.e(f"v_lshl_add_u32 v{R.vV}, v{R.vT0}, 4, v{R.vV}")
    a.e(f"v_cmp_gt_u32 s[{R.sMaskV}:{R.sMaskV+1}], 18, v{R.vT0}")
    a.e(f"v_cmp_gt_u32 s[{R.sMaskLo}:{R.sMaskLo+1}], 32, v{R.vLane}")
    a.e(f"s_lshl_b32 s{R.sK0}, s{R.sHead}, 16\ns_add_u32 s{R.sK0}, s{R.sK0}, {L.KM}")
    a.e(f"s_lshl_b32 s{R.sKR0}, s{R.sTmp}, 14\ns_add_u32 s{R.sKR0}, s{R.sKR0}, {L.KR}")
    a.e(f"s_mul_i32 s{R.sV0}, s{R.sHead}, 73728\ns_add_u32 s{R.sV0}, s{R.sV0}, {L.VT}")

def emit_q_loads(a):
    a.e(f"s_lshl_b32 s{R.sK}, s{R.sHead}, 16\ns_lshl_b32 s{R.sKR}, s{R.sTa}, 10\ns_add_u32 s{R.sK}, s{R.sK}, s{R.sKR}")
    if L.QM: a.e(f"s_add_u32 s{R.sK}, s{R.sK}, {L.QM}")
    a.e(f"s_lshl_b32 s{R.sKR}, s{R.sTmp}, 14\ns_lshl_b32 s{R.sV}, s{R.sTa}, 8\ns_add_u32 s{R.sKR}, s{R.sKR}, s{R.sV}\ns_add_u32 s{R.sKR}, s{R.sKR}, {L.QR}")
    a.e(f"buffer_load_dwordx4 {vr(R.Qa,4)}, v{R.vL16}, s[{R.srd}:{R.srd+3}], s{R.sK} offen")
    a.e(f"buffer_load_dwordx4 {vr(R.Qb,4)}, v{R.vL16}, s[{R.srd}:{R.srd+3}], s{R.sK} offen offset:1024")
    a.e(f"buffer_load_dword v{R.Ra}, v{R.vR8}, s[{R.srd}:{R.srd+3}], s{R.sKR} offen")
    a.e(f"buffer_load_dword v{R.Rb}, v{R.vR8}, s[{R.srd}:{R.srd+3}], s{R.sKR} offen offset:256")

def emit_ring_consts(a):
    a.e(f"v_and_b32 v{R.vT0}, 31, v{R.vLane}")
    a.e(f"v_mov_b32 v{R.vT1}, 0x3f803f80")
    a.e(f"v_cmp_eq_u32 vcc, 18, v{R.vT0}")
    a.e("s_nop 1")
    a.e(f"v_cndmask_b32 v{R.vT2}, 0, v{R.vT1}, vcc")
    for b in range(NB):
        a.e(f"v_accvgpr_write_b32 a{R.ring+16*b+5}, v{R.vT1}")
        for k in range(8):
            a.e(f"v_accvgpr_write_b32 a{R.ring+16*b+8+k}, v{R.vT2}")

def emit_attention(a, pfx="A", prof=False):
    srd = f"s[{R.srd}:{R.srd+3}]"
    a.e(f"s_mov_b32 s{R.sFb}, 0")
    a.e(f"s_mov_b32 s{R.sOff}, {hex(f32bits(OFF))}")
    a.label(f"{pfx}_fill")
    a.e(f"s_mov_b32 s{R.sK}, s{R.sK0}\ns_mov_b32 s{R.sKR}, s{R.sKR0}\ns_mov_b32 s{R.sV}, s{R.sV0}")
    for b in range(NB - 1):
        ring_loads(a, b)
    a.e(f"s_cmp_lg_u32 s{R.sFb}, 0")
    a.e(f"s_cbranch_scc1 {pfx}_setmax")
    a.e(f"s_waitcnt vmcnt({4*(NB-3)})")
    a.e(f"v_cndmask_b32 v{R.Ra}, 0, v{R.Ra}, s[{R.sMaskLo}:{R.sMaskLo+1}]")
    a.e(f"v_cndmask_b32 v{R.Rb}, 0, v{R.Rb}, s[{R.sMaskLo}:{R.sMaskLo+1}]")
    a.e(f"v_mov_b32 v{R.Ra+1}, 0\nv_mov_b32 v{R.Rb+1}, 0\ns_nop 1")
    for t in range(2):
        a.e(qk_main(R.Sa, R.Qa, t)); a.e(qk_main(R.Sb, R.Qb, t))
        a.e(qk_rem(R.Sa, R.Ra, t));  a.e(qk_rem(R.Sb, R.Rb, t))
        a.e("s_nop 10")
        max16(a, R.Sa, R.vMa, t == 0)
        max16(a, R.Sb, R.vMb, t == 0)
    cross_half_max(a, R.vMa)
    cross_half_max(a, R.vMb)
    a.label(f"{pfx}_setmax")
    a.e(f"s_waitcnt vmcnt({4*(NB-3)})")
    set_shift(a, R.vMa, R.Ra)
    set_shift(a, R.vMb, R.Rb)
    for i in range(16):
        a.e(f"v_mov_b32 v{R.Oa+i}, 0\nv_mov_b32 v{R.Ob+i}, 0")
    for i in range(8):
        a.e(f"v_mov_b32 v{R.Pb+i}, 0")
    a.e(qk_main(R.Sa, R.Qa, 0)); a.e(qk_rem(R.Sa, R.Ra, 0))
    a.e(f"s_mov_b32 s{R.sCnt}, {64 // NB}")
    a.e("s_nop 9")
    if prof: a.e("s_memtime s[82:83]\ns_waitcnt lgkmcnt(0)")
    a.e(".p2align 6")
    a.label(f"{pfx}_loop")
    body = Asm()
    for i in range(NB):
        b, bp, bn = i, (i - 1) % NB, (i + 1) % NB
        slot(body, R.Sa, R.Pa, [qk_main(R.Sb, R.Qb, b), qk_rem(R.Sb, R.Rb, b), pv(R.Ob, R.Pb, bp, 0), pv(R.Ob, R.Pb, bp, 1)])
        body.e(f"s_waitcnt vmcnt({4*(NB-3)})")
        ld = lines_of(ring_loads, bp)
        slot(body, R.Sb, R.Pb, [qk_main(R.Sa, R.Qa, bn), qk_rem(R.Sa, R.Ra, bn), pv(R.Oa, R.Pa, b, 0), pv(R.Oa, R.Pa, b, 1)],
             extra={0: ld[0:2], 1: ld[2:6], 2: ld[6:9]})
    body.e(f"s_sub_u32 s{R.sCnt}, s{R.sCnt}, 1\ns_cmp_lg_u32 s{R.sCnt}, 0\ns_cbranch_scc1 {pfx}_loop")
    check(body.lines + body.lines, "attn loop")
    a.lines += body.lines
    if prof: a.e("s_memtime s[84:85]")
    bl = (64 - 1) % NB
    a.e(pv(R.Ob, R.Pb, bl, 0)); a.e(pv(R.Ob, R.Pb, bl, 1))
    a.e("s_nop 11")
    a.e(f"s_cmp_lg_u32 s{R.sFb}, 0")
    a.e(f"s_cbranch_scc1 {pfx}_finish")
    for O in (R.Oa, R.Ob):
        M = R.vT2 if O == R.Oa else R.vT3
        a.e(f"v_max3_f32 v{M}, |v{O}|, |v{O+1}|, |v{O+2}|")
        for i in range(3, 9, 2):
            a.e(f"v_max3_f32 v{M}, v{M}, |v{O+i}|, |v{O+i+1}|")
        a.e(f"v_max_f32 v{M}, v{M}, |v{O+9}|")
    a.e(f"v_max_f32 v{R.vT2}, v{R.vT2}, v{R.vT3}")
    a.e(f"v_mov_b32 v{R.vT0}, {hex(O_LIMIT)}\nv_mov_b32 v{R.vT1}, {hex(L_LIMIT)}")
    a.e(f"v_cmp_lt_f32 vcc, v{R.vT2}, v{R.vT0}")
    a.e(f"v_cmp_lt_f32 s[{R.sTmp}:{R.sTmp+1}], v{R.Oa+10}, v{R.vT1}")
    a.e(f"s_and_b64 vcc, vcc, s[{R.sTmp}:{R.sTmp+1}]")
    a.e(f"v_cmp_lt_f32 s[{R.sTmp}:{R.sTmp+1}], v{R.Ob+10}, v{R.vT1}")
    a.e(f"s_and_b64 vcc, vcc, s[{R.sTmp}:{R.sTmp+1}]")
    a.e("s_cmp_eq_u64 vcc, -1")
    a.e(f"s_cbranch_scc1 {pfx}_finish")
    a.e("s_waitcnt vmcnt(0)")
    a.e(f"s_mov_b32 s{R.sFb}, 1\ns_mov_b32 s{R.sOff}, 0")
    a.e(f"s_mov_b32 s{R.sK}, s{R.sK0}\ns_mov_b32 s{R.sKR}, s{R.sKR0}\ns_mov_b32 s{R.sCnt}, 64")
    a.e(f"v_mov_b32 v{R.Ra+1}, 0\nv_mov_b32 v{R.Rb+1}, 0")
    a.e(f"v_mov_b32 v{R.vMa}, 0xff800000\nv_mov_b32 v{R.vMb}, 0xff800000")
    a.label(f"{pfx}_fbloop")
    a.e(f"buffer_load_dwordx4 {kb(0)}, v{R.vL16}, {srd}, s{R.sK} offen")
    a.e(f"buffer_load_dword {krb0(0)}, v{R.vR8}, {srd}, s{R.sKR} offen")
    a.e(f"s_add_u32 s{R.sK}, s{R.sK}, 1024\ns_add_u32 s{R.sKR}, s{R.sKR}, 256")
    a.e("s_waitcnt vmcnt(0)")
    a.e(qk_main(R.Sa, R.Qa, 0)); a.e(qk_main(R.Sb, R.Qb, 0))
    a.e(qk_rem(R.Sa, R.Ra, 0));  a.e(qk_rem(R.Sb, R.Rb, 0))
    a.e("s_nop 10")
    max16(a, R.Sa, R.vMa, False)
    max16(a, R.Sb, R.vMb, False)
    a.e(f"s_sub_u32 s{R.sCnt}, s{R.sCnt}, 1\ns_cmp_lg_u32 s{R.sCnt}, 0\ns_cbranch_scc1 {pfx}_fbloop")
    cross_half_max(a, R.vMa)
    cross_half_max(a, R.vMb)
    a.e(f"s_branch {pfx}_fill")
    a.label(f"{pfx}_finish")
    a.e("s_waitcnt vmcnt(0)")

def emit_finish(a):
    srd = f"s[{R.srd}:{R.srd+3}]"
    a.e(f"s_lshl_b32 s{R.sK}, s{R.sTa}, 15\ns_lshl_b32 s{R.sKR}, s{R.sHead}, 10\ns_add_u32 s{R.sK}, s{R.sK}, s{R.sKR}\ns_add_u32 s{R.sK}, s{R.sK}, {L.OM}")
    a.e(f"s_lshl_b32 s{R.sKR}, s{R.sTa}, 12\ns_lshr_b32 s{R.sV}, s{R.sHead}, 2\ns_lshl_b32 s{R.sV}, s{R.sV}, 9\ns_add_u32 s{R.sKR}, s{R.sKR}, s{R.sV}")
    a.e(f"s_and_b32 s{R.sV}, s{R.sHead}, 3\ns_lshl_b32 s{R.sV}, s{R.sV}, 2\ns_add_u32 s{R.sKR}, s{R.sKR}, s{R.sV}\ns_add_u32 s{R.sKR}, s{R.sKR}, {L.OR}")
    a.e(f"v_and_b32 v{R.vT3}, 31, v{R.vLane}\nv_lshlrev_b32 v{R.vT3}, 4, v{R.vT3}")
    for k, O in enumerate((R.Oa, R.Ob)):
        a.e(f"v_mov_b32 v{R.vT0}, v{O+10}\nv_mov_b32 v{R.vT1}, v{O+10}\ns_nop 1")
        a.e(f"v_permlane32_swap_b32 v{R.vT0}, v{R.vT1}")
        a.e(f"s_nop 1\nv_rcp_f32 v{R.vT0}, v{R.vT0}\ns_nop 0")
        for i in range(10):
            a.e(f"v_mul_f32 v{O+i}, v{R.vT0}, v{O+i}")
        P = R.Pa if k == 0 else R.Pb
        for i in range(5):
            a.e(f"v_cvt_pk_bf16_f32 v{P+i}, v{O+2*i}, v{O+2*i+1}")
        a.e(f"buffer_store_dwordx4 {vr(P,4)}, v{R.vL16}, {srd}, s{R.sK} offen")
        a.e(f"s_mov_b64 exec, s[{R.sMaskLo}:{R.sMaskLo+1}]")
        a.e(f"buffer_store_dword v{P+4}, v{R.vT3}, {srd}, s{R.sKR} offen")
        a.e("s_mov_b64 exec, -1")
        if k == 0:
            a.e(f"s_add_u32 s{R.sK}, s{R.sK}, 32768\ns_add_u32 s{R.sKR}, s{R.sKR}, 4096")

import struct
def f32bits(x): return struct.unpack("<I", struct.pack("<f", x))[0]

def emit_ids(a, sR, sG, tmpbase):
    t = tmpbase
    a.e(f"s_and_b32 s{t}, s2, 7\ns_lshr_b32 s{t+1}, s2, 3")
    a.e(f"s_and_b32 s{sR}, s{t}, 1\ns_and_b32 s{t+2}, s{t+1}, 7\ns_lshl_b32 s{t+2}, s{t+2}, 1\ns_add_u32 s{sR}, s{sR}, s{t+2}")
    a.e(f"s_lshr_b32 s{sG}, s{t}, 1\ns_lshr_b32 s{t+2}, s{t+1}, 3\ns_lshl_b32 s{t+2}, s{t+2}, 2\ns_add_u32 s{sG}, s{sG}, s{t+2}")

def stamp(a, idx, on):
    if on:
        a.e(f"s_memtime s[{80+2*idx}:{81+2*idx}]")
def stamp_rt(a, idx, on):
    if on:
        a.e(f"s_memrealtime s[{80+2*idx}:{81+2*idx}]")

def emit_stamps_out(a, n, wave_sgpr):
    a.e("s_waitcnt lgkmcnt(0)")
    a.e("s_load_dwordx2 s[4:5], s[0:1], 56\ns_waitcnt lgkmcnt(0)")
    a.e(f"s_lshl_b32 s3, s2, 2\ns_add_u32 s3, s3, s{wave_sgpr}\ns_lshl_b32 s3, s3, 6")
    for i in range(n):
        a.e(f"v_mov_b32 v2, s{80+2*i}\nv_mov_b32 v4, s3\nglobal_store_dword v4, v2, s[4:5] offset:{4*i}")

def kernel(name, prof=False):
    a = Asm()
    a.e(f".globl {name}\n.p2align 8\n.type {name},@function")
    a.label(name)
    a.e("s_cmp_ge_u32 s2, 256")
    a.e(f"s_cbranch_scc1 {name}_end")
    a.e("s_load_dwordx2 s[4:5], s[0:1], 64")
    a.e(f"v_and_b32 v{R.vLane}, 63, v0\nv_lshrrev_b32 v1, 6, v0\ns_nop 0\nv_readfirstlane_b32 s40, v1")
    emit_ids(a, 41, 42, 44)
    a.e("s_waitcnt lgkmcnt(0)")
    a.e(f"s_mov_b32 s8, s4\ns_mov_b32 s9, s5\ns_mov_b32 s10, {L.WS_END}\ns_mov_b32 s11, 0x20000")
    a.e(f"s_lshr_b32 s{R.sTmp2}, s40, 1\ns_lshl_b32 s{R.sHead}, s42, 1\ns_add_u32 s{R.sHead}, s{R.sHead}, s{R.sTmp2}")
    a.e(f"s_and_b32 s43, s40, 1\ns_lshl_b32 s43, s43, 1\ns_lshl_b32 s{R.sTa}, s41, 2\ns_add_u32 s{R.sTa}, s{R.sTa}, s43")
    a.e(f"s_mov_b32 s{R.sTmp}, s42")
    stamp(a, 0, prof); stamp_rt(a, 4, prof)
    emit_setup(a)
    emit_q_loads(a)
    emit_ring_consts(a)
    emit_attention(a, name, prof)
    emit_finish(a)
    if prof:
        a.e("s_waitcnt vmcnt(0)")
        stamp(a, 3, True); stamp_rt(a, 5, True)
        emit_stamps_out(a, 6, 40)
    a.label(f"{name}_end")
    a.e("s_endpgm")
    return a

KD = """.section .rodata,"a"
.p2align 6
.amdhsa_kernel {name}
  .amdhsa_next_free_vgpr {vgpr}
  .amdhsa_next_free_sgpr 102
  .amdhsa_accum_offset {acc}
  .amdhsa_group_segment_fixed_size 0
  .amdhsa_kernarg_size 72
  .amdhsa_user_sgpr_count 2
  .amdhsa_user_sgpr_kernarg_segment_ptr 1
  .amdhsa_system_sgpr_workgroup_id_x 1
.end_amdhsa_kernel
.text
"""

if __name__ == "__main__":
    a = kernel("attn_kernel")
    errs = check(a.lines, "attn")
    print(len(a.lines), "lines;", len(errs), "hazards")
```

```python
from asmlib import *
import layout as L
from k_attn import emit_ids, f32bits, stamp, stamp_rt, emit_stamps_out

class R:
    ACC = 16
    B = 96
    PB = 132
    SEL0, SEL1 = 164, 168
    AF = 172
    vL16, vLane, vRd, vRdR, vDma = 188, 189, 190, 191, 192
    vT0, vT1, vT2, vT3, vT4, vT5, vT6, vT7 = 194, 195, 196, 197, 198, 199, 200, 201
    sWS, sX, sWo, sOut = 8, 12, 16, 20
    sW, sRr, sJ = 40, 41, 42
    sT, sCg = 43, 44
    sT0, sT1, sT2, sT3 = 56, 57, 58, 59
    sLds = 45
def srd(b): return f"s[{b}:{b+3}]"

WREG = 46080 // 2
ROUND_BYTES = 5*72*64

def emit_final(a, pfx, prof=False):
    ln = R.vLane
    w = R.sW
    a.e(f"v_lshlrev_b32 v{R.vL16}, 4, v{ln}")
    a.e(f"s_lshl_b32 s{R.sT0}, s{R.sT}, 15\ns_lshl_b32 s{R.sT1}, s{w}, 13\ns_add_u32 s{R.sT0}, s{R.sT0}, s{R.sT1}\ns_add_u32 s{R.sT0}, s{R.sT0}, {L.OM}")
    for i in range(8):
        if i == 4: a.e(f"s_add_u32 s{R.sT0}, s{R.sT0}, 4096")
        a.e(f"buffer_load_dwordx4 {vr(R.B+4*i,4)}, v{R.vL16}, {srd(R.sWS)}, s{R.sT0} offen offset:{(i%4)*1024}")
    a.e(f"s_lshl_b32 s{R.sT0}, s{R.sT}, 12\ns_lshl_b32 s{R.sT1}, s{w}, 10\ns_add_u32 s{R.sT0}, s{R.sT0}, s{R.sT1}\ns_add_u32 s{R.sT0}, s{R.sT0}, {L.OR}")
    a.e(f"buffer_load_dwordx4 {vr(R.B+32,4)}, v{R.vL16}, {srd(R.sWS)}, s{R.sT0} offen")
    a.e(f"v_lshrrev_b32 v{R.vT0}, 2, v{ln}\nv_and_b32 v{R.vT1}, 3, v{ln}\nv_lshlrev_b32 v{R.vT1}, 4, v{R.vT1}")
    a.e(f"s_mov_b32 s{R.sT0}, 1152\nv_mad_u32_u24 v{R.vDma}, v{R.vT0}, s{R.sT0}, v{R.vT1}")
    a.e(f"s_mul_i32 s{R.sT0}, s{R.sCg}, 288\nv_add_u32 v{R.vDma}, s{R.sT0}, v{R.vDma}")
    a.e(f"s_mul_i32 s{R.sLds}, s{w}, {LDS_WAVE}")
    a.e(f"v_lshrrev_b32 v{R.vT0}, 5, v{ln}\nv_bfe_u32 v{R.vT1}, v{ln}, 4, 1\nv_bfe_u32 v{R.vT2}, v{ln}, 2, 2\nv_and_b32 v{R.vT3}, 3, v{ln}")
    a.e(f"v_lshlrev_b32 v{R.vT4}, 5, v{R.vT1}\nv_lshl_add_u32 v{R.vT4}, v{R.vT3}, 3, v{R.vT4}")
    a.e(f"v_lshl_add_u32 v{R.vT5}, v{R.vT0}, 2, v{R.vT2}\nv_lshl_add_u32 v{R.vRd}, v{R.vT5}, 6, v{R.vT4}")
    a.e(f"v_add_u32 v{R.vRd}, s{R.sLds}, v{R.vRd}")
    a.e(f"v_lshrrev_b32 v{R.vT5}, 1, v{R.vT2}\nv_mul_u32_u24 v{R.vT5}, 18, v{R.vT5}\nv_and_b32 v{R.vT6}, 1, v{R.vT2}\nv_add_u32 v{R.vT5}, v{R.vT5}, v{R.vT6}")
    a.e(f"v_mul_u32_u24 v{R.vT6}, 36, v{R.vT0}\nv_add3_u32 v{R.vT5}, v{R.vT5}, v{R.vT6}, 16")
    a.e(f"v_lshl_add_u32 v{R.vRdR}, v{R.vT5}, 6, v{R.vT4}\nv_add_u32 v{R.vRdR}, s{R.sLds}, v{R.vRdR}")
    a.e(f"v_and_b32 v{R.vT0}, 31, v{ln}\nv_lshrrev_b32 v{R.vT1}, 5, v{ln}\nv_lshlrev_b32 v{R.vT1}, 2, v{R.vT1}\nv_sub_u32 v{R.vT0}, v{R.vT0}, v{R.vT1}")
    a.e(f"v_mov_b32 v{R.vT2}, 0x3f80\nv_mov_b32 v{R.vT3}, 0x3f800000")
    for t, dst in ((0, R.SEL0), (1, R.SEL1)):
        for p in range(4):
            lo = 16*t + (2*p if p < 2 else 8 + 2*(p-2))
            a.e(f"v_cmp_eq_u32 vcc, {lo}, v{R.vT0}\ns_nop 1\nv_cndmask_b32 v{R.vT4}, 0, v{R.vT2}, vcc")
            a.e(f"v_cmp_eq_u32 vcc, {lo+1}, v{R.vT0}\ns_nop 1\nv_cndmask_b32 v{R.vT5}, 0, v{R.vT3}, vcc")
            a.e(f"v_or_b32 v{dst+p}, v{R.vT4}, v{R.vT5}")
    for i in range(80): a.e(f"v_mov_b32 v{R.ACC+i}, 0")

    def stage(rnd):
        n = 0
        for p in range(2):
            a.e(f"s_lshl_b32 s{R.sT0}, s{w}, 3\ns_add_u32 s{R.sT0}, s{R.sT0}, {4*p + 2*rnd}\ns_mul_i32 s{R.sT0}, s{R.sT0}, {18*1152}")
            for ti in range(5):
                for pc in range(3):
                    if pc == 2:
                        a.e(f"s_mov_b64 exec, 0xffff")
                    a.e(f"s_add_u32 m0, s{R.sLds}, {ti*4608 + (36*p + 16*pc)*64}")
                    a.e(f"s_add_u32 s{R.sT1}, s{R.sT0}, {16*pc*1152 + ti*64}")
                    a.e(f"buffer_load_dwordx4 v{R.vDma}, {srd(R.sWo)}, s{R.sT1} offen lds")
                    if pc == 2: a.e("s_mov_b64 exec, -1")
                    n += 1
        return n
    def compute(rnd):
        seq = []
        for lh in range(4):
            bi = (lh % 2) + 4*(lh // 2) + 2*rnd
            for ti in range(5):
                seq.append((R.vRd, ti*4608 + 18*lh*64, ti*4608 + (18*lh + 8)*64, R.B + 4*bi, ti))
        k = 0
        for vb, o1, o2, b, ti in seq:
            f = R.AF + 4*(k % 4)
            a.e(f"ds_read_b64_tr_b16 {vr(f,2)}, v{vb} offset:{o1}\nds_read_b64_tr_b16 {vr(f+2,2)}, v{vb} offset:{o2}")
            a.e("s_waitcnt lgkmcnt(0)")
            a.e(f"v_mfma_f32_32x32x16_bf16 {vr(R.ACC+16*ti,16)}, {vr(f,4)}, {vr(b,4)}, {vr(R.ACC+16*ti,16)}")
            k += 1
        for ti in range(5):
            a.e(f"ds_read_b64_tr_b16 {vr(R.PB + 4*ti + 2*rnd, 2)}, v{R.vRdR} offset:{ti*4608}")
        a.e("s_waitcnt lgkmcnt(0)")

    n0 = stage(0)
    a.e("s_waitcnt vmcnt(0)")
    compute(0)
    stage(1)
    a.e("s_waitcnt vmcnt(0)")
    compute(1)
    for ti in range(5):
        a.e(f"v_mfma_f32_32x32x16_bf16 {vr(R.ACC+16*ti,16)}, {vr(R.PB+4*ti,4)}, {vr(R.B+32,4)}, {vr(R.ACC+16*ti,16)}")
    a.e(f"s_mul_i32 s{R.sT0}, s{R.sT}, 36\ns_mul_i32 s{R.sT1}, s{R.sCg}, 9\ns_add_u32 s{R.sT0}, s{R.sT0}, s{R.sT1}\ns_lshl_b32 s{R.sT0}, s{R.sT0}, 4")
    a.e(f"s_lshl_b32 s{R.sT1}, s{w}, 2\ns_add_u32 s{R.sT0}, s{R.sT0}, s{R.sT1}\ns_lshl_b32 s{R.sT0}, s{R.sT0}, 10\ns_add_u32 s{R.sT0}, s{R.sT0}, {L.PART}")
    items = [(v, k) for v in range(9) for k in range(4)]
    a.e("s_nop 7")
    def pload(n):
        v, k = items[n]
        f = R.PB + 4*(n % 8)
        if k == 0 and v > 0: a.e(f"s_add_u32 s{R.sT0}, s{R.sT0}, 16384")
        a.e(f"buffer_load_dwordx4 {vr(f,4)}, v{R.vL16}, {srd(R.sWS)}, s{R.sT0} offen offset:{k*1024}")
    for n in range(7): pload(n)
    for n, (v, k) in enumerate(items):
        if n + 7 < len(items):
            pload(n + 7); a.e("s_waitcnt vmcnt(7)")
        else:
            a.e(f"s_waitcnt vmcnt({len(items)-1-n})")
        f = R.PB + 4*(n % 8)
        sel = R.SEL0 if v % 2 == 0 else R.SEL1
        ti = v // 2
        a.e(f"v_mfma_f32_32x32x16_bf16 {vr(R.ACC+16*ti,16)}, {vr(sel,4)}, {vr(f,4)}, {vr(R.ACC+16*ti,16)}")
    a.e("s_nop 11\ns_barrier")
    ROWB = 592
    a.e(f"v_and_b32 v{R.vT0}, 31, v{ln}\nv_lshrrev_b32 v{R.vT1}, 5, v{ln}")
    a.e(f"v_mul_u32_u24 v{R.vT2}, {ROWB}, v{R.vT0}\nv_lshl_add_u32 v{R.vT2}, v{R.vT1}, 4, v{R.vT2}")
    a.e(f"s_mul_i32 s{R.sT0}, s{w}, {32*ROWB}\nv_add_u32 v{R.vT2}, s{R.sT0}, v{R.vT2}")
    for q in range(18):
        ti, j = divmod(q, 4)
        a.e(f"ds_write_b128 v{R.vT2}, {vr(R.ACC+16*ti+4*j,4)} offset:{(32*ti+8*j)*4}")
    a.e("s_waitcnt lgkmcnt(0)\ns_barrier")
    a.e(f"s_lshl_b32 s{R.sT0}, s{w}, 6\nv_add_u32 v{R.vT0}, s{R.sT0}, v{ln}")
    a.e(f"s_mul_i32 s{R.sT1}, s{R.sT}, {32*1152}\ns_mul_i32 s{R.sT2}, s{R.sCg}, 288\ns_add_u32 s{R.sT1}, s{R.sT1}, s{R.sT2}")
    for k in range(3):
        idr, row, ch, la, ga = R.vT1, R.vT2, R.vT3, R.vT4, R.vT5
        a.e(f"v_add_u32 v{idr}, {256*k}, v{R.vT0}")
        if k == 2:
            a.e(f"v_cmp_gt_u32 vcc, 576, v{idr}\ns_and_saveexec_b64 s[{R.sT2}:{R.sT2+1}], vcc\ns_cbranch_execz {pfx}_done")
        a.e(f"v_mul_u32_u24 v{row}, 3641, v{idr}\nv_lshrrev_b32 v{row}, 16, v{row}")
        a.e(f"v_mul_u32_u24 v{ch}, 18, v{row}\nv_sub_u32 v{ch}, v{idr}, v{ch}")
        a.e(f"v_mul_u32_u24 v{la}, {ROWB}, v{row}\nv_lshl_add_u32 v{la}, v{ch}, 5, v{la}")
        a.e(f"v_mul_u32_u24 v{ga}, 1152, v{row}\nv_lshl_add_u32 v{ga}, v{ch}, 4, v{ga}")
        a.e(f"buffer_load_dwordx4 {vr(R.B,4)}, v{ga}, {srd(R.sX)}, s{R.sT1} offen")
        D = R.ACC
        for wv in range(4):
            a.e(f"ds_read_b128 {vr(D+8*wv,4)}, v{la} offset:{wv*32*ROWB}\nds_read_b128 {vr(D+8*wv+4,4)}, v{la} offset:{wv*32*ROWB+16}")
        a.e("s_waitcnt lgkmcnt(0)")
        for i in range(8):
            a.e(f"v_add_f32 v{D+i}, v{D+i}, v{D+8+i}\nv_add_f32 v{D+16+i}, v{D+16+i}, v{D+24+i}")
        for i in range(8): a.e(f"v_add_f32 v{D+i}, v{D+i}, v{D+16+i}")
        a.e("s_waitcnt vmcnt(0)")
        for i in range(4):
            a.e(f"v_lshlrev_b32 v{R.vT6}, 16, v{R.B+i}\nv_and_b32 v{R.vT7}, 0xffff0000, v{R.B+i}")
            a.e(f"v_add_f32 v{D+2*i}, v{D+2*i}, v{R.vT6}\nv_add_f32 v{D+2*i+1}, v{D+2*i+1}, v{R.vT7}")
        for i in range(4): a.e(f"v_cvt_pk_bf16_f32 v{R.B+4+i}, v{D+2*i}, v{D+2*i+1}")
        a.e(f"buffer_store_dwordx4 {vr(R.B+4,4)}, v{ga}, {srd(R.sOut)}, s{R.sT1} offen")
        a.e("s_nop 1")
    a.label(f"{pfx}_done")

LDS_WAVE = 5*4608
LDS_BYTES = 4*32*592
LDS_BYTES = max(LDS_BYTES, 4*LDS_WAVE + 1024)

def kernel(name, prof=False):
    a = Asm()
    a.e(f".globl {name}\n.p2align 8\n.type {name},@function")
    a.label(name)
    a.e("s_cmp_ge_u32 s2, 256")
    a.e(f"s_cbranch_scc1 {name}_end")
    a.e(f"v_and_b32 v{R.vLane}, 63, v0\nv_lshrrev_b32 v1, 6, v0\ns_nop 0\nv_readfirstlane_b32 s{R.sW}, v1")
    emit_ids(a, R.sRr, R.sJ, R.sT0)
    a.e("s_load_dwordx2 s[4:5], s[0:1], 0\ns_load_dwordx2 s[6:7], s[0:1], 16\ns_load_dwordx2 s[32:33], s[0:1], 48\ns_load_dwordx2 s[36:37], s[0:1], 64")
    a.e("s_waitcnt lgkmcnt(0)")
    for base, ptr, size in ((R.sX, 4, 2048*1152), (R.sWo, 6, 576*1152), (R.sOut, 32, 2048*1152), (R.sWS, 36, L.WS_END)):
        a.e(f"s_mov_b32 s{base}, s{ptr}\ns_mov_b32 s{base+1}, s{ptr+1}\ns_mov_b32 s{base+2}, {size}\ns_mov_b32 s{base+3}, 0x20000")
    a.e(f"s_and_b32 s{R.sT0}, s{R.sJ}, 3\ns_lshl_b32 s{R.sT}, s{R.sRr}, 2\ns_add_u32 s{R.sT}, s{R.sT}, s{R.sT0}\ns_lshr_b32 s{R.sCg}, s{R.sJ}, 2")
    stamp(a, 0, prof); stamp_rt(a, 2, prof)
    emit_final(a, name, prof)
    a.e("s_mov_b64 exec, -1")
    if prof:
        a.e("s_waitcnt vmcnt(0)")
        stamp(a, 1, True); stamp_rt(a, 3, True)
        emit_stamps_out(a, 4, R.sW)
    a.label(f"{name}_end")
    a.e("s_endpgm")
    return a

if __name__ == "__main__":
    a = kernel("final_kernel")
    errs = check(a.lines, "final")
    print(len(a.lines), "lines;", len(errs), "hazards; LDS", LDS_BYTES)
```

```python
from asmlib import *
import layout as L
from k_attn import emit_ids, f32bits, stamp, stamp_rt, emit_stamps_out

SLOT = 36864
class R:
    X = 0
    ACC0, ACC1 = 144, 160
    TMP = 176
    TBL0 = 192
    TBL1 = 200
    vRdX, vRdH, vRdB = 208, 209, 210
    vCur0, vCur1, vNxt0, vNxt1 = 212, 213, 214, 215
    vDq, vD1, vD1b, vD2 = 216, 217, 218, 219
    vDma = 220
    vL16, vLane = 221, 222
    vT0, vT1, vT2, vT3, vT4, vT5, vT6, vT7 = 224, 225, 226, 227, 228, 229, 230, 231
    AF = 0
    H = 16
    sWS, sX, sWq, sW1, sW2, sNull = 8, 12, 16, 20, 24, 28
    sW, sRr, sG = 40, 41, 42
    sLdsW = 43
    sRowQ, sRow1, sRow1b, sRow2a, sRow2b = 44, 45, 46, 47, 48
    sColU0, sColU1, sColW1, sColW1s = 49, 50, 51, 52
    sScale0, sScale1 = 53, 54
    sPart = 55
    sT0, sT1, sT2, sT3 = 56, 57, 58, 59
    sSt1 = 72
    sU1kind = 76
    sDoff = 77
    sPoff = 78

def srd(b): return f"s[{b}:{b+3}]"

def emit_srds(a):
    a.e("s_load_dwordx4 s[4:7], s[0:1], 0")
    a.e("s_load_dwordx4 s[32:35], s[0:1], 32")
    a.e("s_load_dwordx2 s[36:37], s[0:1], 64")
    a.e("s_waitcnt lgkmcnt(0)")
    for base, ptr, size in ((R.sX, 4, 2048*1152), (R.sWq, 6, 576*3456), (R.sW1, 32, 576*9216), (R.sW2, 34, 4608*1152),
                            (R.sWS, 36, L.WS_END), (R.sNull, 36, 0)):
        a.e(f"s_mov_b32 s{base}, s{ptr}\ns_mov_b32 s{base+1}, s{ptr+1}\ns_mov_b32 s{base+2}, {size}\ns_mov_b32 s{base+3}, 0x20000")

def emit_x_dma(a):
    a.e(f"v_lshrrev_b32 v{R.vT0}, 3, v{R.vLane}")
    a.e(f"v_lshrrev_b32 v{R.vT1}, 1, v{R.vT0}")
    a.e(f"v_and_b32 v{R.vT2}, 7, v{R.vLane}")
    a.e(f"v_xor_b32 v{R.vT2}, v{R.vT2}, v{R.vT1}")
    a.e(f"v_mul_u32_u24 v{R.vT0}, 1152, v{R.vT0}")
    a.e(f"v_lshl_add_u32 v{R.vT3}, v{R.vT2}, 4, v{R.vT0}")
    a.e(f"v_xor_b32 v{R.vT2}, 4, v{R.vT2}")
    a.e(f"v_lshl_add_u32 v{R.vT4}, v{R.vT2}, 4, v{R.vT0}")
    a.e(f"s_lshl_b32 s{R.sT0}, s{R.sRr}, 2\ns_add_u32 s{R.sT0}, s{R.sT0}, s{R.sW}\ns_mul_i32 s{R.sT0}, s{R.sT0}, {32*1152}")
    a.e(f"s_mul_i32 s{R.sT1}, s{R.sW}, {SLOT}")
    for rg in range(4):
        for ln in range(9):
            a.e(f"s_add_u32 m0, s{R.sT1}, {(rg*9+ln)*1024}")
            a.e(f"s_add_u32 s{R.sT2}, s{R.sT0}, {rg*8*1152 + ln*128}")
            a.e(f"buffer_load_dwordx4 v{R.vT3 if rg % 2 == 0 else R.vT4}, {srd(R.sX)}, s{R.sT2} offen lds")

def emit_x_reads(a):
    a.e(f"v_and_b32 v{R.vT0}, 31, v{R.vLane}\nv_lshrrev_b32 v{R.vT1}, 5, v{R.vLane}")
    a.e(f"v_lshrrev_b32 v{R.vT2}, 3, v{R.vT0}\nv_mul_u32_u24 v{R.vT2}, 9216, v{R.vT2}")
    a.e(f"v_and_b32 v{R.vT3}, 7, v{R.vT0}\nv_lshl_add_u32 v{R.vT2}, v{R.vT3}, 7, v{R.vT2}")
    a.e(f"s_mul_i32 s{R.sT1}, s{R.sW}, {SLOT}\nv_add_u32 v{R.vT2}, s{R.sT1}, v{R.vT2}")
    a.e(f"v_lshrrev_b32 v{R.vT3}, 1, v{R.vT0}\nv_and_b32 v{R.vT3}, 7, v{R.vT3}")
    for q in range(4):
        a.e(f"v_add_u32 v{R.vT0}, {2*q}, v{R.vT1}\nv_xor_b32 v{R.vT0}, v{R.vT0}, v{R.vT3}")
        a.e(f"v_lshl_add_u32 v{R.vT4+q}, v{R.vT0}, 4, v{R.vT2}")
    a.e("s_waitcnt vmcnt(0)")
    for s in range(36):
        a.e(f"ds_read_b128 {vr(R.X+4*s,4)}, v{R.vT4 + s % 4} offset:{(s//4)*1024}")

def emit_ln(a):
    S = [R.ACC0 + i for i in range(4)]; Q = [R.ACC0 + 4 + i for i in range(4)]
    for x in S + Q: a.e(f"v_mov_b32 v{x}, 0")
    a.e(f"s_mov_b32 s{R.sT0}, 0x3f803f80")
    for i in range(144):
        a.e(f"v_dot2c_f32_bf16 v{S[i%4]}, s{R.sT0}, v{R.X+i}")
        a.e(f"v_dot2c_f32_bf16 v{Q[i%4]}, v{R.X+i}, v{R.X+i}")
    a.e("s_nop 2")
    a.e(f"v_add_f32 v{S[0]}, v{S[0]}, v{S[1]}\nv_add_f32 v{S[2]}, v{S[2]}, v{S[3]}\nv_add_f32 v{Q[0]}, v{Q[0]}, v{Q[1]}\nv_add_f32 v{Q[2]}, v{Q[2]}, v{Q[3]}")
    a.e(f"v_add_f32 v{S[0]}, v{S[0]}, v{S[2]}\nv_add_f32 v{Q[0]}, v{Q[0]}, v{Q[2]}")
    for x in (S[0], Q[0]):
        a.e(f"v_mov_b32 v{R.vT0}, v{x}\nv_mov_b32 v{R.vT1}, v{x}\ns_nop 1\nv_permlane32_swap_b32 v{R.vT0}, v{R.vT1}\ns_nop 1\nv_add_f32 v{x}, v{R.vT0}, v{R.vT1}")
    inv = hex(f32bits(1.0/576))
    a.e(f"v_mul_f32 v{S[0]}, {inv}, v{S[0]}")
    a.e(f"v_mul_f32 v{Q[0]}, {inv}, v{Q[0]}")
    a.e(f"v_fma_f32 v{Q[0]}, -v{S[0]}, v{S[0]}, v{Q[0]}")
    a.e(f"v_max_f32 v{Q[0]}, 0, v{Q[0]}")
    a.e(f"v_add_f32 v{Q[0]}, {hex(f32bits(1e-5))}, v{Q[0]}")
    a.e(f"v_rsq_f32 v{R.vT6}, v{Q[0]}\ns_nop 0")
    a.e(f"v_mul_f32 v{R.vT7}, v{S[0]}, v{R.vT6}\nv_sub_f32 v{R.vT7}, 0, v{R.vT7}")
    a.e(f"s_mov_b32 s{R.sT0}, 0xffff0000")
    for i in range(144):
        t0, t1 = R.vT0 + 2*(i % 2), R.vT1 + 2*(i % 2)
        a.e(f"v_lshlrev_b32 v{t0}, 16, v{R.X+i}\nv_and_b32 v{t1}, s{R.sT0}, v{R.X+i}")
        a.e(f"v_fma_f32 v{t0}, v{t0}, v{R.vT6}, v{R.vT7}\nv_fma_f32 v{t1}, v{t1}, v{R.vT6}, v{R.vT7}")
        a.e(f"v_cvt_pk_bf16_f32 v{R.X+i}, v{t0}, v{t1}")

def emit_lane_bases(a):
    ln = R.vLane
    a.e(f"v_lshrrev_b32 v{R.vT0}, 5, v{ln}")
    a.e(f"v_bfe_u32 v{R.vT1}, v{ln}, 4, 1")
    a.e(f"v_bfe_u32 v{R.vT2}, v{ln}, 2, 2")
    a.e(f"v_and_b32 v{R.vT3}, 3, v{ln}")
    a.e(f"v_lshlrev_b32 v{R.vT4}, 5, v{R.vT1}\nv_lshl_add_u32 v{R.vT4}, v{R.vT3}, 3, v{R.vT4}")
    a.e(f"v_lshrrev_b32 v{R.vT5}, 1, v{R.vT2}\nv_lshlrev_b32 v{R.vT5}, 6, v{R.vT5}\nv_xor_b32 v{R.vT5}, v{R.vT4}, v{R.vT5}")
    a.e(f"v_lshl_add_u32 v{R.vT6}, v{R.vT0}, 3, v{R.vT2}\nv_lshl_add_u32 v{R.vRdX}, v{R.vT6}, 7, v{R.vT5}")
    a.e(f"v_lshl_add_u32 v{R.vRdB}, v{R.vT6}, 6, v{R.vT4}")
    a.e(f"v_lshl_add_u32 v{R.vT6}, v{R.vT0}, 2, v{R.vT2}\nv_lshl_add_u32 v{R.vRdH}, v{R.vT6}, 7, v{R.vT5}")
    a.e(f"v_lshrrev_b32 v{R.vT0}, 3, v{ln}\nv_bfe_u32 v{R.vT1}, v{ln}, 4, 1\nv_lshlrev_b32 v{R.vT1}, 2, v{R.vT1}")
    a.e(f"v_and_b32 v{R.vT2}, 7, v{ln}\nv_xor_b32 v{R.vT2}, v{R.vT2}, v{R.vT1}\nv_lshlrev_b32 v{R.vT2}, 4, v{R.vT2}")
    for dst, rb in ((R.vDq, 3456), (R.vD1, 9216), (R.vD2, 1152)):
        a.e(f"s_mov_b32 s{R.sT0}, {rb}\nv_mad_u32_u24 v{dst}, v{R.vT0}, s{R.sT0}, v{R.vT2}")
    a.e(f"v_lshrrev_b32 v{R.vT0}, 2, v{ln}\nv_and_b32 v{R.vT2}, 3, v{ln}\nv_lshlrev_b32 v{R.vT2}, 4, v{R.vT2}")
    a.e(f"s_mov_b32 s{R.sT0}, 9216\nv_mad_u32_u24 v{R.vD1b}, v{R.vT0}, s{R.sT0}, v{R.vT2}")
    a.e(f"v_lshlrev_b32 v{R.vL16}, 4, v{ln}")

def emit_scalars(a):
    w, r, g = R.sW, R.sRr, R.sG
    a.e(f"s_mul_i32 s{R.sLdsW}, s{w}, 9216")
    a.e(f"s_mul_i32 s{R.sRowQ}, s{w}, {72*3456}")
    a.e(f"s_mul_i32 s{R.sRow1}, s{w}, {72*9216}")
    a.e(f"s_mul_i32 s{R.sRow1b}, s{w}, {144*9216}")
    a.e(f"s_and_b32 s{R.sT0}, s{g}, 1\ns_lshl_b32 s{R.sT1}, s{R.sT0}, 5")
    a.e(f"s_mul_i32 s{R.sT2}, s{g}, 288\ns_add_u32 s{R.sT2}, s{R.sT2}, s{R.sT1}\ns_mul_i32 s{R.sT1}, s{w}, 72\ns_add_u32 s{R.sT2}, s{R.sT2}, s{R.sT1}")
    a.e(f"s_mul_i32 s{R.sRow2a}, s{R.sT2}, 1152")
    a.e(f"s_cmp_eq_u32 s{w}, 3\ns_cselect_b32 s{R.sT1}, s{R.sT0}, 0\ns_mul_i32 s{R.sT1}, s{R.sT1}, {288*1152}\ns_sub_u32 s{R.sRow2b}, s{R.sRow2a}, s{R.sT1}")
    a.e(f"s_mul_i32 s{R.sT2}, s{g}, 576\ns_lshl_b32 s{R.sT1}, s{R.sT0}, 6\ns_add_u32 s{R.sColW1}, s{R.sT2}, s{R.sT1}")
    a.e(f"s_cmp_eq_u32 s{R.sT0}, 0\ns_cselect_b32 s{R.sT1}, 512, 0\ns_add_u32 s{R.sColW1s}, s{R.sT2}, s{R.sT1}")
    a.e(f"s_lshl_b32 s{R.sColU0}, s{g}, 7")
    a.e(f"s_add_u32 s{R.sT1}, s{g}, 16\ns_cmp_lt_u32 s{g}, 11\ns_cselect_b32 s{R.sT1}, s{R.sT1}, s{g}\ns_lshl_b32 s{R.sColU1}, s{R.sT1}, 7")
    a.e(f"s_cmp_lt_u32 s{g}, 9\ns_cselect_b32 s{R.sScale0}, {hex(f32bits(L.QSCALE))}, 1.0")
    a.e(f"s_mov_b32 s{R.sScale1}, 1.0")
    a.e(f"s_sub_u32 s{R.sT1}, s{g}, 2\ns_cmp_lt_u32 s{R.sT1}, 9\ns_cselect_b32 s{R.sU1kind}, 1, 0")
    a.e(f"s_mov_b32 s{R.sSt1}, s{R.sWS}\ns_mov_b32 s{R.sSt1+1}, s{R.sWS+1}\ns_cmp_lt_u32 s{g}, 11\ns_cselect_b32 s{R.sSt1+2}, s{R.sWS+2}, 0\ns_mov_b32 s{R.sSt1+3}, 0x20000")
    a.e(f"s_lshl_b32 s{R.sT1}, s{r}, 2\ns_add_u32 s{R.sT1}, s{R.sT1}, s{w}\ns_mul_i32 s{R.sT1}, s{R.sT1}, {36*16}\ns_add_u32 s{R.sT1}, s{R.sT1}, s{g}")
    a.e(f"s_lshl_b32 s{R.sPart}, s{R.sT1}, 10\ns_add_u32 s{R.sPart}, s{R.sPart}, {L.PART}")

def emit_tables(a):
    w, r, g = R.sW, R.sRr, R.sG
    ln = R.vLane
    m, hf = R.vT0, R.vT1
    a.e(f"v_and_b32 v{m}, 31, v{ln}\nv_lshrrev_b32 v{hf}, 5, v{ln}")
    a.e(f"s_lshl_b32 s{R.sT3}, s{r}, 2\ns_add_u32 s{R.sT3}, s{R.sT3}, s{w}")
    def qk_tables(tbl, sU, sMain, sRem):
        for T in range(2):
            for j in range(4):
                d = tbl + 4*T + j
                qi, hp, qq, t5 = R.vT2, R.vT3, R.vT4, R.vT5
                a.e(f"s_lshl_b32 s{R.sDoff}, s{sU}, 4\ns_add_u32 s{R.sDoff}, s{R.sDoff}, {8*T + 2*j}")
                a.e(f"v_add_u32 v{qi}, s{R.sDoff}, v{hf}")
                a.e(f"v_mul_u32_u24 v{hp}, 57, v{qi}\nv_lshrrev_b32 v{hp}, 9, v{hp}")
                a.e(f"v_mul_u32_u24 v{t5}, 9, v{hp}\nv_sub_u32 v{qq}, v{qi}, v{t5}")
                a.e(f"v_cmp_lt_u32 vcc, 4, v{qq}")
                a.e(f"v_lshlrev_b32 v{qi}, 1, v{hp}")
                a.e(f"v_subrev_u32 v{t5}, 5, v{qq}")
                a.e(f"v_cndmask_b32 v{t5}, v{qq}, v{t5}, vcc")
                a.e(f"v_addc_co_u32 v{qi}, vcc, 0, v{qi}, vcc")
                a.e(f"v_lshlrev_b32 v{qi}, 16, v{qi}")
                a.e(f"v_lshrrev_b32 v{R.vT6}, 1, v{t5}\nv_lshl_add_u32 v{qi}, v{R.vT6}, 9, v{qi}")
                a.e(f"v_and_b32 v{R.vT6}, 1, v{t5}\nv_lshl_add_u32 v{qi}, v{R.vT6}, 3, v{qi}")
                a.e(f"v_lshl_add_u32 v{qi}, v{m}, 4, v{qi}\nv_add_u32 v{qi}, s{sMain}, v{qi}")
                a.e(f"v_lshlrev_b32 v{hp}, 14, v{hp}\nv_lshl_add_u32 v{hp}, v{m}, 3, v{hp}\nv_add_u32 v{hp}, s{sRem}, v{hp}")
                a.e(f"v_cmp_eq_u32 vcc, 4, v{qq}\ns_nop 1")
                a.e(f"v_cndmask_b32 v{d}, v{qi}, v{hp}, vcc")
    sU, sM, sR_ = R.sT0, R.sT1, R.sT2
    a.e(f"s_cmp_lt_u32 s{g}, 9")
    assert L.QM == 0
    a.e(f"s_cselect_b32 s{sM}, 0, {L.KM}\ns_cselect_b32 s{sR_}, 0, {L.KR - L.QR}\ns_cselect_b32 s{sU}, 0, 9\ns_sub_u32 s{sU}, s{g}, s{sU}\ns_add_u32 s{sR_}, s{sR_}, {L.QR}")
    a.e(f"s_lshl_b32 s{R.sPoff}, s{R.sT3}, 10\ns_add_u32 s{sM}, s{sM}, s{R.sPoff}\ns_lshl_b32 s{R.sPoff}, s{R.sT3}, 8\ns_add_u32 s{sR_}, s{sR_}, s{R.sPoff}")
    qk_tables(R.TBL0, sU, sM, sR_)
    lab = a.lines.count("__tbl__")
    a.e(f"s_cmp_eq_u32 s{R.sU1kind}, 1\ns_cbranch_scc1 FR_tbl_v")
    a.e(f"s_add_u32 s{sU}, s{g}, 7\ns_cmp_lt_u32 s{g}, 2\ns_cselect_b32 s{sU}, s{sU}, 0")
    a.e(f"s_lshl_b32 s{R.sPoff}, s{R.sT3}, 10\ns_add_u32 s{sM}, s{R.sPoff}, {L.KM}\ns_lshl_b32 s{R.sPoff}, s{R.sT3}, 8\ns_add_u32 s{sR_}, s{R.sPoff}, {L.KR}")
    qk_tables(R.TBL1, sU, sM, sR_)
    a.e("s_branch FR_tbl_done")
    a.label("FR_tbl_v")
    a.e(f"s_sub_u32 s{sU}, s{g}, 2\ns_lshl_b32 s{sU}, s{sU}, 6")
    a.e(f"s_mul_i32 s{sM}, s{R.sT3}, 1152\ns_add_u32 s{sM}, s{sM}, {L.VT}")
    for T in range(2):
        c, h = R.vT2, R.vT3
        a.e(f"s_add_u32 s{R.sDoff}, s{sU}, {32*T}\nv_add_u32 v{c}, s{R.sDoff}, v{m}")
        a.e(f"v_mul_u32_u24 v{h}, 3641, v{c}\nv_lshrrev_b32 v{h}, 16, v{h}")
        a.e(f"v_mul_u32_u24 v{R.vT4}, 18, v{h}\nv_sub_u32 v{c}, v{c}, v{R.vT4}")
        a.e(f"s_mov_b32 s{R.sDoff}, 73728\nv_mul_lo_u32 v{h}, v{h}, s{R.sDoff}")
        a.e(f"v_lshl_add_u32 v{h}, v{c}, 4, v{h}\nv_mul_u32_u24 v{R.vT4}, 288, v{hf}\nv_add3_u32 v{R.TBL1+T}, v{h}, v{R.vT4}, s{sM}")
    a.label("FR_tbl_done")

def epi_qk(acc, tbl, sScale, ssrd, tset):
    o = []; t = R.TMP + 8*tset
    for j in range(4):
        for i in range(4): o.append(f"v_mul_f32 v{acc+4*j+i}, s{sScale}, v{acc+4*j+i}")
        o.append(f"v_cvt_pk_bf16_f32 v{t+2*j}, v{acc+4*j}, v{acc+4*j+1}")
        o.append(f"v_cvt_pk_bf16_f32 v{t+2*j+1}, v{acc+4*j+2}, v{acc+4*j+3}")
        o.append(f"buffer_store_dwordx2 {vr(t+2*j,2)}, v{tbl+j}, {srd(ssrd)}, 0 offen")
    return o
def epi_v(acc, tbl, ssrd, tset):
    o = []; t = R.TMP + 8*tset
    for i in range(8):
        o.append(f"v_cvt_pk_bf16_f32 v{t+i}, v{acc+2*i}, v{acc+2*i+1}")
        if i == 3: o.append(f"buffer_store_dwordx4 {vr(t,4)}, v{tbl}, {srd(ssrd)}, 0 offen")
    o.append(f"buffer_store_dwordx4 {vr(t+4,4)}, v{tbl}, {srd(ssrd)}, 0 offen offset:576")
    return o
def epi_h(acc, slot, tset):
    o = []; t = R.TMP + 8*tset
    for i in range(8): o.append(f"v_cvt_pk_bf16_f32 v{t+i}, v{acc+2*i}, v{acc+2*i+1}")
    for i in range(8): o.append(f"v_pk_max_i16 v{t+i}, v{t+i}, 0")
    for i in range(8): o.append(f"v_accvgpr_write_b32 a{R.H+8*slot+i}, v{t+i}")
    return o
def epi_p(acc, tile, tset):
    o = []; t = R.TMP + 8*tset
    for tt in range(2):
        for i in range(4): o.append(f"v_cvt_pk_bf16_f32 v{t+4*tt+i}, v{acc+8*tt+2*i}, v{acc+8*tt+2*i+1}")
        o.append(f"s_add_u32 s{R.sPoff}, s{R.sPart}, {(2*tile+tt)*16384}")
        o.append(f"buffer_store_dwordx4 {vr(t+4*tt,4)}, v{R.vL16}, {srd(R.sWS)}, s{R.sPoff} offen")
    return o

class Slab:
    def __init__(self, kind, steps, dma):
        self.kind = kind
        self.steps = steps
        self.dma = dma
        self.slot = None

def unit_slabs(cols_sgpr, coladd, kind_w, F, S, swapped):
    out = []
    for h in range(2):
        steps = []
        for T, acc in ((0, F), (1, S)):
            for ks in range(18):
                steps.append(dict(tile=T, ks=ks, breg=vr(R.X + 4*(18*h+ks), 4), acc=acc, first=(h == 0 and ks == 0), swapped=swapped))
        if kind_w == "q":
            dma = dict(srd=R.sWq, vbase=R.vDq, scol=cols_sgpr, coladd=coladd, rows=lambda ii, h=h: (R.sRowQ, (288*h + 8*ii)*3456))
        else:
            dma = dict(srd=R.sW1, vbase=R.vD1, scol=cols_sgpr, coladd=coladd, rows=lambda ii, h=h: (R.sRow1, (288*h + 8*ii)*9216))
        out.append(Slab("X", steps, dma))
    return out
def single_slab(F):
    steps = [dict(tile=0, ks=s, breg=vr(R.X + 4*s, 4), acc=F, first=(s == 0), swapped=False) for s in range(36)]
    dma = dict(srd=R.sW1, vbase=R.vD1b, scol=R.sColW1s, coladd=0, rows=lambda ii: (R.sRow1b, 16*ii*9216))
    return Slab("B", steps, dma)
KORDER = [0, 1, 2, 3, 4, 5, 6, 8, 7]
def w2_slab(un, F, S):
    steps = []
    for T, acc in ((0, F), (1, S)):
        n = 0
        for jj in KORDER:
            for t in range(2):
                steps.append(dict(tile=T, ks=2*jj + t, breg=ar(R.H + 8*jj + 4*t, 4), acc=acc, first=(n == 0), swapped=False)); n += 1
    dma = dict(srd=R.sW2, vbase=R.vD2, scol=None, coladd=128*un,
               rows=lambda ii: (R.sRow2a if ii < 5 else R.sRow2b, 8*ii*1152))
    return Slab("H", steps, dma)

BAR = 30
DMA_POS = [(0, 31), (0, 34), (1, 2), (1, 6), (1, 10), (1, 14), (1, 18), (1, 22), (1, 26)]

class Path:
    def __init__(self): self.n = 0; self.last = {}
    def copy(self):
        p = Path(); p.n = self.n; p.last = dict(self.last); return p

def dma_prep_col(sl):
    d = sl.dma
    if d["scol"] is not None:
        o = [f"s_add_u32 s{R.sT0}, s{d['scol']}, {d['coladd']}"] if d["coladd"] else []
        src = f"s{R.sT0}" if d["coladd"] else f"s{d['scol']}"
        return o + [f"v_add_u32 v{R.vDma}, {src}, v{d['vbase']}"]
    return [f"v_add_u32 v{R.vDma}, {d['coladd']}, v{d['vbase']}"]
def dma_ops(sl, ii):
    sg, lit = sl.dma["rows"](ii)
    return [f"s_add_u32 m0, s{R.sLdsW}, {sl.slot*SLOT + ii*1024}",
            f"s_add_u32 s{R.sDoff}, s{sg}, {lit}",
            f"buffer_load_dwordx4 v{R.vDma}, {srd(sl.dma['srd'])}, s{R.sDoff} offen lds"]

def read_bases(sl, dst0, dst1):
    base = {"X": R.vRdX, "H": R.vRdH, "B": R.vRdB}[sl.kind]
    o = [f"v_add_u32 v{dst0}, {sl.slot*SLOT}, v{base}"]
    if sl.kind != "B": o.append(f"v_xor_b32 v{dst1}, 64, v{dst0}")
    return o
def frag_reads(sl, st, fi, b0, b1):
    s = sl.steps[st]
    reg = b0 if s["tile"] == 0 else b1
    if sl.kind == "B": o1, o2 = s["ks"]*1024, s["ks"]*1024 + 256
    elif sl.kind == "X": o1, o2 = s["ks"]*2048, s["ks"]*2048 + 512
    else: o1, o2 = s["ks"]*2048, s["ks"]*2048 + 1024
    f = R.AF + 4*(fi % 4)
    return [f"ds_read_b64_tr_b16 {ar(f,2)}, v{reg} offset:{o1}", f"ds_read_b64_tr_b16 {ar(f+2,2)}, v{reg} offset:{o2}"]

def emit_slabs(a, slabs, i0, i1, fill, path, nall):
    for i in range(i0, i1):
        sl = slabs[i]
        cur = (R.vCur0, R.vCur1) if i % 2 == 0 else (R.vNxt0, R.vNxt1)
        nxt = (R.vNxt0, R.vNxt1) if i % 2 == 0 else (R.vCur0, R.vCur1)
        for st in range(36):
            n = i*36 + st
            if st + 3 < 36:
                for x in frag_reads(sl, st + 3, n + 3, *cur): a.e(x)
                a.e("s_waitcnt lgkmcnt(6)")
            elif i + 1 < nall:
                for x in frag_reads(slabs[i+1], st + 3 - 36, n + 3, *nxt): a.e(x)
                a.e("s_waitcnt lgkmcnt(6)")
            else:
                a.e(f"s_waitcnt lgkmcnt({2*(35-st)})")
            s = sl.steps[st]
            af = ar(R.AF + 4*(n % 4), 4)
            c = "0" if s["first"] else vr(s["acc"], 16)
            if s["swapped"]: a.e(f"v_mfma_f32_32x32x16_bf16 {vr(s['acc'],16)}, {s['breg']}, {af}, {c}")
            else:            a.e(f"v_mfma_f32_32x32x16_bf16 {vr(s['acc'],16)}, {af}, {s['breg']}, {c}")
            ex = [(x, None) for x in fill.get((i, st), [])]
            if st == 20 and i + 1 < nall:
                ex += [(x, None) for x in read_bases(slabs[i+1], *nxt)]
            if st == BAR and i + 1 < nall:
                ex += [("WAIT", i + 1), ("s_barrier", None)]
                if i + 3 < nall: ex += [(x, None) for x in dma_prep_col(slabs[i+3])]
            for ii, (dd, ds) in enumerate(DMA_POS):
                tgt = i + 3 - dd
                if ds == st and tgt < nall and tgt >= 3 and (i - dd) >= 0:
                    ex += [(x, tgt) for x in dma_ops(slabs[tgt], ii)]
            for x, tag in ex:
                if x == "WAIT":
                    a.e(f"s_waitcnt vmcnt({path.n - path.last[tag]})")
                    continue
                a.e(x)
                if x.startswith("buffer_"):
                    path.n += 1
                    if " lds" in x: path.last[tag] = path.n

def spread(fill, slab, ops, s0=3, s1=17):
    n = s1 - s0 + 1
    per = -(-len(ops) // n)
    for k, x in enumerate(ops):
        fill.setdefault((slab, s0 + k // per), []).append(x)

def build_slabs(u1_swapped):
    F, S = R.ACC0, R.ACC1
    slabs, fill = [], {}
    slabs += unit_slabs(R.sColU0, 0, "q", F, S, False)
    spread(fill, 1, epi_qk(F, R.TBL0, R.sScale0, R.sWS, 0), 21, 35)
    spread(fill, 2, epi_qk(S, R.TBL0 + 4, R.sScale0, R.sWS, 1), 3, 17)
    slabs += unit_slabs(R.sColU1, 0, "q", F, S, u1_swapped)
    if u1_swapped:
        spread(fill, 3, epi_v(F, R.TBL1, R.sSt1, 0), 21, 35)
        spread(fill, 4, epi_v(S, R.TBL1 + 1, R.sSt1, 1), 3, 17)
    else:
        spread(fill, 3, epi_qk(F, R.TBL1, R.sScale1, R.sSt1, 0), 21, 35)
        spread(fill, 4, epi_qk(S, R.TBL1 + 4, R.sScale1, R.sSt1, 1), 3, 17)
    slabs.append(single_slab(F))
    spread(fill, 5, epi_h(F, 8, 0), 3, 17)
    F, S = S, F
    for uu in range(4):
        i = len(slabs)
        slabs += unit_slabs(R.sColW1, 128*uu, "1", F, S, False)
        spread(fill, i + 1, epi_h(F, 2*uu, 1), 21, 35)
        spread(fill, i + 2, epi_h(S, 2*uu + 1, 0), 3, 13 if uu == 3 else 17)
    for un in range(9):
        i = len(slabs)
        slabs.append(w2_slab(un, F, S))
        spread(fill, i, epi_p(F, 2*un, 1), 21, 35)
        if un < 8: spread(fill, i + 1, epi_p(S, 2*un + 1, 0), 3, 17)
    for i, sl in enumerate(slabs): sl.slot = i % 4
    return slabs, fill, S

def emit_main(a, prof=False):
    slabsN, fillN, S = build_slabs(False)
    slabsV, fillV, _ = build_slabs(True)
    nall = len(slabsN)
    path = Path()
    for i in range(3):
        for x in dma_prep_col(slabsN[i]): a.e(x)
        for ii in range(9):
            for x in dma_ops(slabsN[i], ii): a.e(x)
            path.n += 1
        path.last[i] = path.n
    return slabsN, fillN, slabsV, fillV, S, nall, path

def kernel(name, prof=False):
    a = Asm()
    a.e(f".globl {name}\n.p2align 8\n.type {name},@function")
    a.label(name)
    a.e("s_cmp_ge_u32 s2, 256")
    a.e(f"s_cbranch_scc1 {name}_end")
    a.e(f"v_and_b32 v{R.vLane}, 63, v0\nv_lshrrev_b32 v1, 6, v0\ns_nop 0\nv_readfirstlane_b32 s{R.sW}, v1")
    emit_ids(a, R.sRr, R.sG, R.sT0)
    emit_srds(a)
    stamp(a, 0, prof); stamp_rt(a, 6, prof)
    emit_x_dma(a)
    emit_lane_bases(a)
    emit_scalars(a)
    emit_tables(a)
    emit_x_reads(a)
    a.e("s_waitcnt lgkmcnt(0)\ns_barrier")
    stamp(a, 1, prof)
    slabsN, fillN, slabsV, fillV, S, nall, path = emit_main(a, prof)
    emit_ln(a)
    stamp(a, 2, prof)
    a.e(f"s_waitcnt vmcnt({path.n - path.last[0]})\ns_barrier")
    for x in read_bases(slabsN[0], R.vCur0, R.vCur1): a.e(x)
    for st in range(3):
        for x in frag_reads(slabsN[0], st, st, R.vCur0, R.vCur1): a.e(x)
    emit_slabs(a, slabsN, 0, 2, fillN, path, nall)
    a.e(f"s_cmp_eq_u32 s{R.sU1kind}, 1\ns_cbranch_scc1 {name}_u1v")
    pN = path.copy(); emit_slabs(a, slabsN, 2, 5, fillN, pN, nall)
    a.e(f"s_branch {name}_join")
    a.label(f"{name}_u1v")
    pV = path.copy(); emit_slabs(a, slabsV, 2, 5, fillV, pV, nall)
    a.label(f"{name}_join")
    path = pN.copy()
    for k in path.last:
        younger = min(pN.n - pN.last[k], pV.n - pV.last[k])
        path.last[k] = path.n - younger
    stamp(a, 3, prof)
    emit_slabs(a, slabsN, 5, 13, fillN, path, nall)
    stamp(a, 4, prof)
    emit_slabs(a, slabsN, 13, nall, fillN, path, nall)
    a.e("s_nop 11")
    for x in epi_p(S, 17, 0): a.e(x)
    if prof:
        a.e("s_waitcnt vmcnt(0)")
        stamp(a, 5, True); stamp_rt(a, 7, True)
        emit_stamps_out(a, 8, R.sW)
    a.label(f"{name}_end")
    a.e("s_endpgm")
    return a

if __name__ == "__main__":
    a = kernel("front_kernel")
    errs = check(a.lines, "front")
    print(len(a.lines), "lines;", len(errs), "hazards")
```

```python
QM = 0
KM = QM + 32*64*1024
QR = KM + 32*64*1024
KR = QR + 16*64*256
VT = KR + 16*64*256
OM = VT + 32*64*1152
OR = OM + 64*32*1024
PART = OR + 64*4096
WS_END = PART + 16*4*36*16*1024
assert PART % 256 == 0
import math
QSCALE = 18 ** -0.5 * math.log2(math.e)
```

```python
import sys
from asmlib import *
import layout as L
import k_front, k_attn, k_final
NAME = "parallel_sum__softmax_full_mha__dense_activation_relu__prompt"
HEADER = open("cdna_kernels/%s.s.ref" % NAME).read().split("; Override launch geometry")[0]

def kd(name, vgpr, acc):
    return f""".section .rodata,"a"
.p2align 6
.amdhsa_kernel {name}
  .amdhsa_next_free_vgpr {vgpr}
  .amdhsa_next_free_sgpr 102
  .amdhsa_accum_offset {acc}
  .amdhsa_group_segment_fixed_size 0
  .amdhsa_kernarg_size 72
  .amdhsa_user_sgpr_count 2
  .amdhsa_user_sgpr_kernarg_segment_ptr 1
  .amdhsa_system_sgpr_workgroup_id_x 1
.end_amdhsa_kernel
.text
"""

def build3(prof=False):
    ks = [("front_kernel", k_front.kernel("front_kernel", prof), 147456, 512, 256),
          ("attn_kernel", k_attn.kernel("attn_kernel", prof), 0, 512, 256),
          ("final_kernel", k_final.kernel("final_kernel", prof), k_final.LDS_BYTES, 256, 256)]
    s = HEADER
    for n, a, lds, v, acc in ks:
        s += f"; @launch kernel={n} grid=(256,1,1) block=(256,1,1) lds={lds}\n"
    s += '.amdgcn_target "amdgcn-amd-amdhsa--gfx950"\n.text\n'
    for n, a, lds, v, acc in ks:
        errs = check(a.lines, n)
        assert not errs
        s += a.text() + kd(n, v, acc)
    return s, [(n, lds, v) for n, a, lds, v, acc in ks]

if __name__ == "__main__":
    s, ks = build3()
    out = sys.argv[1] if len(sys.argv) > 1 else f"cdna_kernels/{NAME}.s"
    open(out, "w").write(s)
    print("wrote", out, len(s), "bytes")
```
